```python
import torch

def _softmax(x, axis=-1):
    return torch.softmax(x, dim=axis)
def _gelu(x):
    return torch.nn.functional.gelu(x, approximate="tanh")
def _silu(x):
    return torch.nn.functional.silu(x)
def _sigmoid(x):
    return torch.sigmoid(x)
def _layernorm(x, axis=-1, eps=1e-5):
    m = x.mean(dim=axis, keepdim=True)
    v = x.var(dim=axis, keepdim=True, unbiased=False)
    return (x - m) / torch.sqrt(v + eps)
def _scatter_add(tgt, idx, src, axis=0):
    return tgt.clone().index_add_(axis, idx, src)
def _segment_sum(src, seg, n):
    out = torch.zeros((n,) + src.shape[1:], dtype=src.dtype)
    return out.index_add_(0, seg, src)
def _pad(x, pw):
    flat = tuple(v for pair in reversed(pw) for v in pair)
    return torch.nn.functional.pad(x, flat)

kernel_name = 'concat_heads__mha_block_cached__mha_block_cached__near_ridge'

def setup_inputs():

    _w = (lambda a: (lambda t: t.to(torch.bfloat16) if t.is_floating_point() else t)(torch.as_tensor(a)))
    def _A_setup():
        B, Sq, D = 8, 288, 448
        H, Sk, Dh = 16, 1024, 256
        return {
            "x": _w((lambda *s: torch.randn(*s, dtype=torch.bfloat16) * 0.8)(B, Sq, D)),
            "k_cache": _w((lambda *s: torch.randn(*s, dtype=torch.bfloat16) * 0.8)(B, H, Sk, Dh)),
            "v_cache": _w((lambda *s: torch.randn(*s, dtype=torch.bfloat16) * 0.05)(B, H, Sk, Dh)),
            "wq": _w((lambda *s: torch.randn(*s, dtype=torch.bfloat16) * 0.8)(D, H * Dh) * (D ** -0.5)),
            "wo": _w((lambda *s: torch.randn(*s, dtype=torch.bfloat16) * 0.05)(H * Dh, D) * ((H * Dh) ** -0.5)),
        }
    _A_in = _A_setup()

    def _B_setup():
        B, Sq, D = 8, 288, 448
        H, Sk, Dh = 16, 1024, 256
        return {
            "x": _w((lambda *s: torch.randn(*s, dtype=torch.bfloat16) * 0.8)(B, Sq, D)),
            "k_cache": _w((lambda *s: torch.randn(*s, dtype=torch.bfloat16) * 0.8)(B, H, Sk, Dh)),
            "v_cache": _w((lambda *s: torch.randn(*s, dtype=torch.bfloat16) * 0.05)(B, H, Sk, Dh)),
            "wq": _w((lambda *s: torch.randn(*s, dtype=torch.bfloat16) * 0.8)(D, H * Dh) * (D ** -0.5)),
            "wo": _w((lambda *s: torch.randn(*s, dtype=torch.bfloat16) * 0.05)(H * Dh, D) * ((H * Dh) ** -0.5)),
        }
    _B_in = _B_setup()

    return {
        "A_x": _A_in["x"],
        "A_k_cache": _A_in["k_cache"],
        "A_v_cache": _A_in["v_cache"],
        "A_wq": _A_in["wq"],
        "A_wo": _A_in["wo"],
        "B_x": _B_in["x"],
        "B_k_cache": _B_in["k_cache"],
        "B_v_cache": _B_in["v_cache"],
        "B_wq": _B_in["wq"],
        "B_wo": _B_in["wo"],
    }

def reference(A_x, A_k_cache, A_v_cache, A_wq, A_wo, B_x, B_k_cache, B_v_cache, B_wq, B_wo):
    def _A_ref(x, k_cache, v_cache, wq, wo):
        B, Sq, D = x.shape
        H, Dh = 16, 256
        q = (lambda x, *d: x.permute(*d))((x @ wq).reshape(B, Sq, H, Dh), 0, 2, 1, 3)
        scores = torch.einsum("bhqd,bhkd->bhqk", q, k_cache) * (Dh ** -0.5)
        p = _softmax(scores, axis=-1)
        o = torch.einsum("bhqk,bhkd->bhqd", p, v_cache)
        return (lambda x, *d: x.permute(*d))(o, 0, 2, 1, 3).reshape(B, Sq, H * Dh) @ wo

    def _B_ref(x, k_cache, v_cache, wq, wo):
        B, Sq, D = x.shape
        H, Dh = 16, 256
        q = (lambda x, *d: x.permute(*d))((x @ wq).reshape(B, Sq, H, Dh), 0, 2, 1, 3)
        scores = torch.einsum("bhqd,bhkd->bhqk", q, k_cache) * (Dh ** -0.5)
        p = _softmax(scores, axis=-1)
        o = torch.einsum("bhqk,bhkd->bhqd", p, v_cache)
        return (lambda x, *d: x.permute(*d))(o, 0, 2, 1, 3).reshape(B, Sq, H * Dh) @ wo

    a = _A_ref(A_x, A_k_cache, A_v_cache, A_wq, A_wo)
    b = _B_ref(B_x, B_k_cache, B_v_cache, B_wq, B_wo)
    return torch.concatenate([a, b], axis=-1)
```

```python
import subprocess, sys
HEAD = """.amdgcn_target "amdgcn-amd-amdhsa--gfx950"
.text
"""
def kernel(name, body, niter, pre="", nvgpr=512, accum=256, post=""):
    s = f""".globl {name}
.p2align 8
.type {name},@function
{name}:
  s_load_dwordx4 s[4:7], s[0:1], 0
  s_waitcnt lgkmcnt(0)
  s_mov_b32 s8, s4
  s_mov_b32 s9, s5
  s_mov_b32 s10, 0x20000000
  s_mov_b32 s11, 0x20000
  s_mov_b32 s12, s6
  s_mov_b32 s13, s7
  s_mov_b32 s14, 0x400000
  s_mov_b32 s15, 0x20000
  v_lshlrev_b32 v1, 4, v0
  s_lshl_b32 s3, s2, 20
  v_add_u32 v1, s3, v1
"""
    off = 0
    for r in range(16, accum, 4):
        s += f"  s_mov_b32 s17, {off}\n  buffer_load_dwordx4 v[{r}:{r+3}], v1, s[8:11], s17 offen\n"
        off += 4096
    for r in range(0, nvgpr - accum, 4):
        s += f"  s_mov_b32 s17, {off}\n  buffer_load_dwordx4 a[{r}:{r+3}], v1, s[8:11], s17 offen\n"
        off += 4096
    s += "  s_waitcnt vmcnt(0)\n"
    s += "  v_lshlrev_b32 v2, 4, v0\n"
    for i in range(16):
        s += f"  ds_write_b128 v2, v[{16+4*i}:{19+4*i}] offset:{i*4096}\n"
    s += "  v_add_u32 v3, 0x10000, v2\n"
    for i in range(16):
        s += f"  ds_write_b128 v3, v[{80+4*i}:{83+4*i}] offset:{i*4096}\n"
    s += "  s_waitcnt lgkmcnt(0)\n"
    s += pre
    s += f"""  s_barrier
  s_memtime s[20:21]
  s_memrealtime s[22:23]
  s_waitcnt lgkmcnt(0)
  s_mov_b32 s16, {niter}
.p2align 6
L_{name}:
{body}
  s_sub_u32 s16, s16, 1
  s_cmp_lg_u32 s16, 0
  s_cbranch_scc1 L_{name}
{post}
  s_waitcnt vmcnt(0) lgkmcnt(0)
  s_memtime s[24:25]
  s_memrealtime s[26:27]
  s_waitcnt lgkmcnt(0)
  s_sub_u32 s24, s24, s20
  s_subb_u32 s25, s25, s21
  s_sub_u32 s26, s26, s22
  s_subb_u32 s27, s27, s23
  v_mov_b32 v4, s24
  v_mov_b32 v5, s25
  v_mov_b32 v6, s26
  v_mov_b32 v7, s27
  v_lshrrev_b32 v8, 6, v0
  s_lshl_b32 s3, s2, 2
  v_add_u32 v8, s3, v8
  v_lshlrev_b32 v8, 4, v8
  v_and_b32 v9, 63, v0
  v_cmp_eq_u32 vcc, 0, v9
  s_and_saveexec_b64 s[30:31], vcc
  buffer_store_dwordx4 v[4:7], v8, s[12:15], 0 offen
  s_endpgm
"""
    kd = f""".section .rodata,"a"
.p2align 6
.amdhsa_kernel {name}
  .amdhsa_next_free_vgpr {nvgpr}
  .amdhsa_next_free_sgpr 102
  .amdhsa_accum_offset {accum}
  .amdhsa_group_segment_fixed_size 0
  .amdhsa_kernarg_size 16
  .amdhsa_user_sgpr_count 2
  .amdhsa_user_sgpr_kernarg_segment_ptr 1
  .amdhsa_system_sgpr_workgroup_id_x 1
.end_amdhsa_kernel
.text
"""
    md = f"""  - .name: {name}
    .symbol: {name}.kd
    .kernarg_segment_size: 16
    .kernarg_segment_align: 8
    .group_segment_fixed_size: 0
    .private_segment_fixed_size: 0
    .wavefront_size: 64
    .sgpr_count: 102
    .vgpr_count: {nvgpr}
    .max_flat_workgroup_size: 1024
    .args:
      - {{.name: kernargs, .size: 16, .offset: 0, .value_kind: by_value}}
"""
    return s + kd, md

def build(fname, kernels):
    src = HEAD + "".join(k[0] for k in kernels)
    src += ".amdgpu_metadata\n---\namdhsa.version: [1, 2]\namdhsa.kernels:\n" + "".join(k[1] for k in kernels) + "...\n.end_amdgpu_metadata\n"
    open(fname + ".s", "w").write(src)
    r = subprocess.run(["clang", "-x", "assembler", "-target", "amdgcn-amd-amdhsa", "-mcpu=gfx950", fname + ".s", "-o", fname + ".co"], capture_output=True, text=True)
    if r.returncode:
        print(r.stderr[:3000]); sys.exit(1)

def build_many(prefix, ks, names, args):
    cmd = f"./bench {args}"
    files=[]
    for i in range(0, len(ks), 14):
        fn=f"{prefix}_{i//14}"
        build(fn, ks[i:i+14])
        files.append(fn+".co")
        cmd += f" {fn}.co " + " ".join(names[i:i+14])
    open(prefix+".sh","w").write(cmd+"\n")
    print(files)

def kernel2(name, body, ninner, nouter, pre="", nvgpr=512, accum=256, post="", fillregs=True):
    k, md = kernel(name, "@@BODY@@", 1, pre, nvgpr, accum, post)
    a = k.index("  s_barrier\n  s_memtime s[20:21]")
    b = k.index(".section .rodata")
    stamp = """  s_memtime s[20:21]
  s_memrealtime s[22:23]
  s_waitcnt lgkmcnt(0)
  v_mov_b32 v4, s20
  v_mov_b32 v5, s22
  s_mov_b64 exec, s[30:31]
  buffer_store_dwordx2 v[4:5], v8, s[12:15], s18 offen
  s_mov_b64 exec, -1
  s_add_u32 s18, s18, 8
"""
    mid = f"""  v_cmp_eq_u32 s[30:31], 0, v0
  s_mul_i32 s3, s2, {(nouter+1)*8}
  v_mov_b32 v8, s3
  s_mov_b32 s18, 0
  s_mov_b32 s19, {nouter}
  s_barrier
{stamp}
LO_{name}:
  s_mov_b32 s16, {ninner}
.p2align 6
L_{name}:
{body}
  s_sub_u32 s16, s16, 1
  s_cmp_lg_u32 s16, 0
  s_cbranch_scc1 L_{name}
{stamp}
  s_sub_u32 s19, s19, 1
  s_cmp_lg_u32 s19, 0
  s_cbranch_scc1 LO_{name}
{post}
  s_endpgm
"""
    return k[:a] + mid + k[b:], md

def build_many2(prefix, ks, names, args):
    cmd = f"./bench2 {args}"
    files=[]
    for i in range(0, len(ks), 14):
        fn=f"{prefix}_{i//14}"
        build(fn, ks[i:i+14])
        files.append("mb/"+fn+".co")
        cmd += f" {fn}.co " + " ".join(names[i:i+14])
    open(prefix+".sh","w").write(cmd+"\n")
    print(files)
```

```python
from mbgen import *
ks=[]; names=[]
NM=80
def mk(nm, L, creg, zero=False, nacc=2, inter=None):
    body=""
    for i in range(NM):
        A=16+(i%8)*4; B=64+(i%40)*4
        base = 224 if creg=='v' else 0
        C=base+((i//L)%nacc)*4
        c = "0" if (zero and i%L==0) else f"{creg}[{C}:{C+3}]"
        body += f"  v_mfma_f32_16x16x32_bf16 {creg}[{C}:{C+3}], v[{A}:{A+3}], v[{B}:{B+3}], {c}\n"
        if inter: body += inter(i)
    ks.append(kernel2(nm, body, 16, 12, "")); names.append(nm)
mk("a_c8", 8, 'a')
mk("v_c8", 8, 'v')
mk("v_c8z", 8, 'v', zero=True)
mk("a_c2", 2, 'a', nacc=40)
mk("v_c8z_w", 8, 'v', zero=True, inter=lambda i: "  s_waitcnt lgkmcnt(5)\n")
mk("v_c8z_2s", 8, 'v', zero=True, inter=lambda i: "  s_add_u32 s40, s41, 3\n  s_add_u32 s42, s41, 3\n  s_add_u32 s43, s41, 3\n")
mk("v_c8z_e", 8, 'v', zero=True, inter=lambda i: (f"  v_exp_f32 v{240+i%8}, v{248+i%4}\n" if i%2==0 else f"  v_add_f32 v{240+i%8}, v{248+i%4}, v250\n  v_add_f32 v{241+i%7}, v{248+i%4}, v250\n"))
build_many2("t15", ks, names, "256 256 131072 30 1 13")
s=open("t15.sh").read().replace("bench2","bench3"); open("t15.sh","w").write(s)
```
